```python
import torch

def _softmax(x, axis=-1):
    return torch.softmax(x, dim=axis)
def _gelu(x):
    return torch.nn.functional.gelu(x, approximate="tanh")
def _silu(x):
    return torch.nn.functional.silu(x)
def _sigmoid(x):
    return torch.sigmoid(x)
def _layernorm(x, axis=-1, eps=1e-5):
    m = x.mean(dim=axis, keepdim=True)
    v = x.var(dim=axis, keepdim=True, unbiased=False)
    return (x - m) / torch.sqrt(v + eps)
def _scatter_add(tgt, idx, src, axis=0):
    return tgt.clone().index_add_(axis, idx, src)
def _segment_sum(src, seg, n):
    out = torch.zeros((n,) + src.shape[1:], dtype=src.dtype)
    return out.index_add_(0, seg, src)
def _pad(x, pw):
    flat = tuple(v for pair in reversed(pw) for v in pair)
    return torch.nn.functional.pad(x, flat)

kernel_name = 'interleave_layers__sliding_block__dense_activation_squared_relu__prompt'

def setup_inputs():

    _w = (lambda a: (lambda t: t.to(torch.bfloat16) if t.is_floating_point() else t)(torch.as_tensor(a)))
    def _A_setup():
        B, S, D = 1, 2048, 640
        return {
            "x": _w((lambda *s: torch.randn(*s, dtype=torch.bfloat16) * 0.05)(B, S, D)),
            "wqkv": _w((lambda *s: torch.randn(*s, dtype=torch.bfloat16) * 0.05)(D, 3 * D)),
            "wo": _w((lambda *s: torch.randn(*s, dtype=torch.bfloat16) * 0.05)(D, D)),
        }
    _A_in = _A_setup()

    def _B_setup():
        B, S, D, F = 1, 2048, 640, 1536
        return {
            "x": _w((lambda *s: torch.randn(*s, dtype=torch.bfloat16) * 0.05)(B, S, D)),
            "w1": _w((lambda *s: torch.randn(*s, dtype=torch.bfloat16) * 0.05)(D, F)),
            "b1": _w((lambda *s: torch.randn(*s, dtype=torch.bfloat16) * 0.2)(F)),
            "w2": _w((lambda *s: torch.randn(*s, dtype=torch.bfloat16) * 0.05)(F, D)),
            "b2": _w((lambda *s: torch.randn(*s, dtype=torch.bfloat16) * 0.8)(D)),
        }
    _B_in = _B_setup()

    return {
        "A_x": _A_in["x"],
        "A_wqkv": _A_in["wqkv"],
        "A_wo": _A_in["wo"],
        "B_x": _B_in["x"],
        "B_w1": _B_in["w1"],
        "B_b1": _B_in["b1"],
        "B_w2": _B_in["w2"],
        "B_b2": _B_in["b2"],
    }

def reference(A_x, A_wqkv, A_wo, B_x, B_w1, B_b1, B_w2, B_b2):
    def _A_ref(x, wqkv, wo):
        B, S, D = x.shape
        H = 32; Dh = D // H; W = 256
        qkv = (lambda x, *d: x.permute(*d))((x @ wqkv).reshape(B, S, 3, H, Dh), 2, 0, 3, 1, 4)
        q, k, v = qkv[0], qkv[1], qkv[2]
        scores = torch.einsum("bhqd,bhkd->bhqk", q, k) * (Dh ** -0.5)
        idx = torch.arange(S)
        mask = (idx[:, None] - idx[None, :] >= 0) & (idx[:, None] - idx[None, :] < W)
        scores = torch.where(mask[None, None], scores, -1e9)
        p = _softmax(scores, axis=-1)
        o = torch.einsum("bhqk,bhkd->bhqd", p, v)
        return (lambda x, *d: x.permute(*d))(o, 0, 2, 1, 3).reshape(B, S, D) @ wo

    def _B_ref(x, w1, b1, w2, b2):
        h = torch.einsum("bsd,df->bsf", x, w1) + b1
        zero = torch.zeros_like(h)
        r = torch.where(h > zero, h, zero)
        h = r * r
        out = torch.einsum("bsf,fd->bsd", h, w2) + b2
        return out

    x = A_x
    x = x + _A_ref(_layernorm(x, axis=-1), A_wqkv, A_wo)
    x = x + _B_ref(_layernorm(x, axis=-1), B_w1, B_b1, B_w2, B_b2)
    x = x + _A_ref(_layernorm(x, axis=-1), A_wqkv, A_wo)
    x = x + _B_ref(_layernorm(x, axis=-1), B_w1, B_b1, B_w2, B_b2)
    return x
```

```python
import re

REG_RE = re.compile(r'^(-|\|)?([vas])(?:(\d+)|\[(\d+):(\d+)\])(\|)?$')

def parse_reg(tok):
    t = tok.strip()
    if t.startswith('abs(') or t.startswith('neg('):
        t = t[4:-1]
    t = t.lstrip('-')
    if t.startswith('abs('):
        t = t[4:-1]
    t = t.strip('|')
    if t in ('vcc', 'vcc_lo', 'vcc_hi'):
        return ('s', 106, 107)
    if t in ('exec', 'exec_lo', 'exec_hi'):
        return ('s', 126, 127)
    if t == 'm0':
        return ('s', 124, 124)
    if t == 'scc':
        return None
    m = REG_RE.match(t)
    if not m:
        return None
    f = m.group(2)
    if m.group(3) is not None:
        lo = hi = int(m.group(3))
    else:
        lo, hi = int(m.group(4)), int(m.group(5))
    return (f, lo, hi)

def regset(tok):
    r = parse_reg(tok)
    if r is None:
        return set()
    return {(r[0], i) for i in range(r[1], r[2] + 1)}

TRANS = ('v_exp_f32', 'v_log_f32', 'v_rcp_f32', 'v_rsq_f32', 'v_sqrt_f32', 'v_sin_f32', 'v_cos_f32',
         'v_rcp_iflag_f32', 'v_exp_f16', 'v_rcp_f16')

class Ins:
    __slots__ = ('op', 'ops', 'mods', 'defs', 'uses', 'kind', 'text', 'passes', 'srcc', 'srcab', 'comment')

VCC = {('s', 106), ('s', 107)}
EXEC = {('s', 126), ('s', 127)}
M0 = {('s', 124)}

def classify(op, ops, mods):
    i = Ins()
    i.op, i.ops, i.mods = op, ops, mods
    i.passes = 0
    i.srcc = set(); i.srcab = set()
    defs, uses = set(), set()
    kind = 'other'
    base = op
    for suf in ('_e32', '_e64', '_dpp', '_sdwa'):
        if base.endswith(suf):
            base = base[:-len(suf)]
    if op.startswith('v_mfma'):
        kind = 'mfma'
        defs |= regset(ops[0])
        i.srcab = regset(ops[1]) | regset(ops[2])
        i.srcc = regset(ops[3])
        uses |= i.srcab | i.srcc
        i.passes = 8 if '32x32' in op else 4
    elif op.startswith('v_'):
        kind = 'valu'
        if base in TRANS:
            kind = 'trans'
        if base.startswith('v_cmp'):
            defs |= regset(ops[0])
            for o in ops[1:]:
                uses |= regset(o)
            if base.startswith('v_cmpx'):
                defs |= EXEC
        elif base in ('v_add_co_u32', 'v_sub_co_u32', 'v_subrev_co_u32', 'v_addc_co_u32', 'v_subb_co_u32', 'v_mad_u64_u32', 'v_div_scale_f32'):
            defs |= regset(ops[0]) | regset(ops[1])
            for o in ops[2:]:
                uses |= regset(o)
        elif base.startswith('v_permlane') and 'swap' in base:
            defs |= regset(ops[0]) | regset(ops[1])
            uses |= regset(ops[0]) | regset(ops[1])
        elif base == 'v_swap_b32':
            defs |= regset(ops[0]) | regset(ops[1])
            uses |= regset(ops[0]) | regset(ops[1])
        else:
            defs |= regset(ops[0])
            for o in ops[1:]:
                uses |= regset(o)
            if base in ('v_fmac_f32', 'v_dot2c_f32_bf16', 'v_pk_fmac_f16', 'v_writelane_b32') or op.endswith('_dpp') or op.endswith('_sdwa'):
                uses |= regset(ops[0])
            if base == 'v_cndmask_b32' and len(ops) == 3:
                uses |= VCC
            if base == 'v_div_fmas_f32':
                uses |= VCC
    elif op.startswith('ds_'):
        kind = 'ds'
        if op.startswith('ds_read') or op.startswith('ds_bpermute') or op.startswith('ds_permute') or op.startswith('ds_swizzle') or '_rtn' in op:
            defs |= regset(ops[0])
            for o in ops[1:]:
                uses |= regset(o)
        else:
            for o in ops:
                uses |= regset(o)
    elif op.startswith('buffer_') or op.startswith('global_'):
        kind = 'vmem'
        ml = mods.split()
        if op in ('buffer_wbl2', 'buffer_inv'):
            pass
        elif 'lds' in ml or '_lds_' in op:
            for o in ops:
                uses |= regset(o)
            uses |= M0
            kind = 'vmem_lds'
        elif '_load' in op:
            defs |= regset(ops[0])
            for o in ops[1:]:
                uses |= regset(o)
        elif 'atomic' in op:
            if 'sc0' in ml:
                if op.startswith('buffer_'):
                    defs |= regset(ops[0])
                    for o in ops:
                        uses |= regset(o)
                else:
                    defs |= regset(ops[0])
                    for o in ops[1:]:
                        uses |= regset(o)
            else:
                for o in ops:
                    uses |= regset(o)
        else:
            kind = 'vmem_store'
            for o in ops:
                uses |= regset(o)
    elif op.startswith('s_load') or op.startswith('s_buffer_load') or op in ('s_memtime', 's_memrealtime') or op.startswith('s_atomic'):
        kind = 'smem'
        defs |= regset(ops[0])
        for o in ops[1:]:
            uses |= regset(o)
        if op.startswith('s_atomic'):
            uses |= regset(ops[0])
    elif op.startswith('s_'):
        kind = 'salu'
        if op.startswith('s_cmp') or op.startswith('s_bitcmp'):
            for o in ops:
                uses |= regset(o)
        elif op in ('s_waitcnt', 's_barrier', 's_nop', 's_endpgm', 's_sleep', 's_setprio', 's_branch') or op.startswith('s_cbranch'):
            kind = 'ctrl'
            if op in ('s_cbranch_vccz', 's_cbranch_vccnz'):
                uses |= VCC
            if op in ('s_cbranch_execz', 's_cbranch_execnz'):
                uses |= EXEC
        elif 'saveexec' in op:
            defs |= regset(ops[0]) | EXEC
            uses |= regset(ops[1]) | EXEC
        elif op == 's_setreg_b32' or op == 's_setreg_imm32_b32':
            for o in ops:
                uses |= regset(o)
        else:
            defs |= regset(ops[0])
            for o in ops[1:]:
                uses |= regset(o)
            if op in ('s_addk_i32', 's_mulk_i32', 's_cmov_b32', 's_cmov_b64'):
                uses |= regset(ops[0])
    i.defs, i.uses, i.kind = defs, uses, kind
    return i

def isv(rs):
    return {r for r in rs if r[0] in 'va'}
def iss(rs):
    return {r for r in rs if r[0] == 's'}

class Asm:
    def __init__(self):
        self.out = []
        self.hist = []
        self.vm = []
        self.lg = []
        self.auto = True
        self.nlabel = 0
        self.maxv = -1; self.maxa = -1; self.maxs = -1

    def raw(self, s):
        self.out.append(s)

    def comment(self, s):
        self.out.append('    ; ' + s)

    def reset_state(self):
        self.hist = []; self.vm = []; self.lg = []
        self.maxv = -1; self.maxa = -1; self.maxs = -1

    def label(self, name):
        self.out.append(name + ':')
        self.fence_hazards()

    def newlabel(self, p='L'):
        self.nlabel += 1
        return '%s_%d' % (p, self.nlabel)

    def fence_hazards(self):
        need = 0
        dist = 0
        for ins, slots in reversed(self.hist):
            if ins.kind == 'mfma':
                n = {4: 8, 8: 12}[ins.passes]
                need = max(need, n - dist)
            elif ins.kind in ('valu', 'trans'):
                n = 5 if iss(ins.defs) else 3
                need = max(need, n - dist)
            elif ins.kind == 'vmem_store':
                need = max(need, 2 - dist)
            elif ins.kind == 'salu' and (ins.defs & M0):
                need = max(need, 1 - dist)
            dist += slots
            if dist > 24:
                break
        self._nop(need)

    def _nop(self, n):
        while n > 0:
            k = min(n, 16)
            i = classify('s_nop', [str(k - 1)], '')
            self.out.append('    s_nop %d' % (k - 1))
            self.hist.append((i, k))
            n -= k

    def _hazard(self, c):
        need = 0
        dist = 0
        cv_uses = isv(c.uses); cv_defs = isv(c.defs)
        cs_uses = iss(c.uses)
        cb = c.op
        is_valu = c.kind in ('valu', 'trans')
        is_mem = c.kind in ('ds', 'vmem', 'vmem_lds', 'vmem_store')
        for p, slots in reversed(self.hist):
            n = 0
            if p.kind == 'mfma':
                tbl = {4: (6, 8, 3), 8: (10, 12, 7)}[p.passes]
                if c.kind == 'mfma':
                    if c.srcab & p.defs:
                        n = max(n, tbl[1])
                    if c.srcc & p.defs:
                        if c.srcc == p.defs and c.passes == p.passes:
                            n = max(n, 0)
                        else:
                            n = max(n, tbl[0])
                    elif c.defs & p.defs:
                        n = max(n, tbl[0])
                elif is_valu or is_mem:
                    if (cv_uses | cv_defs) & p.defs:
                        n = max(n, tbl[1])
                    if is_valu and (cv_defs & p.srcc):
                        n = max(n, tbl[2])
                    if is_mem and (cv_defs & p.srcc):
                        n = max(n, tbl[2])
            elif p.kind in ('valu', 'trans'):
                pv = isv(p.defs); ps = iss(p.defs)
                if c.kind == 'mfma' and (c.uses & pv):
                    n = max(n, 2)
                if p.op.startswith('v_dot') and ((c.uses | c.defs) & pv):
                    if c.op == p.op and not (set().union(*[regset(o) for o in c.ops[1:3]]) & pv):
                        pass
                    else:
                        n = max(n, 3)
                if c.kind == 'mfma' and (p.defs & EXEC):
                    n = max(n, 4)
                if is_valu:
                    if cb.startswith('v_permlane') and (cv_uses & pv):
                        n = max(n, 2)
                    if cb.endswith('_dpp') and (cv_uses & pv):
                        n = max(n, 2)
                    if cb.endswith('_dpp') and (p.defs & EXEC):
                        n = max(n, 5)
                    if (cb.startswith('v_readlane') or cb.startswith('v_readfirstlane')) and (cv_uses & pv):
                        n = max(n, 1)
                    if (cb.startswith('v_readlane') or cb.startswith('v_readfirstlane') or cb.startswith('v_writelane') or cb.startswith('v_permlane')) and (p.defs & EXEC):
                        n = max(n, 4)
                    if ps and (cs_uses & ps):
                        n = max(n, 4 if (cb.startswith('v_readlane') or cb.startswith('v_writelane') or cb.startswith('v_div_fmas')) else 2)
                    if p.kind == 'trans' and c.kind != 'trans' and (cv_uses & pv):
                        n = max(n, 1)
                    if p.kind == 'trans' and (cv_uses & pv):
                        n = max(n, 1)
                    if (p.op.endswith('_sdwa') or 'op_sel' in p.mods) and ((cv_uses | cv_defs) & pv):
                        n = max(n, 1)
                if c.kind in ('vmem', 'vmem_lds', 'vmem_store') and ps and (cs_uses & ps):
                    n = max(n, 5)
                if c.kind in ('salu', 'smem', 'ctrl') and ps and (cs_uses & ps):
                    n = max(n, 2 if c.kind != 'ctrl' else 5)
            elif p.kind == 'vmem_store':
                if ('x4' in p.op or 'x3' in p.op):
                    data = regset(p.ops[0]) if p.op.startswith('buffer_') else regset(p.ops[1])
                    if cv_defs & data:
                        n = max(n, 2)
            elif p.kind == 'salu':
                if (p.defs & M0) and (c.uses & M0) and c.kind != 'salu':
                    n = max(n, 1)
            need = max(need, n - dist)
            dist += slots
            if dist > 24:
                break
        self._nop(need)

    def _autowait(self, c):
        touched = c.uses | c.defs
        vm_need = None
        for idx, dst in enumerate(self.vm):
            if dst & touched:
                vm_need = len(self.vm) - 1 - idx
        lg_need = None
        for idx, (k, dst) in enumerate(self.lg):
            if dst & touched:
                if any(kk == 'smem' for kk, _ in self.lg):
                    lg_need = 0
                else:
                    n = len(self.lg) - 1 - idx
                    lg_need = n if lg_need is None else min(lg_need, n)
        if vm_need is not None or lg_need is not None:
            self.wait(vm=vm_need, lgkm=lg_need)

    def wait(self, vm=None, lgkm=None):
        parts = []
        if vm is not None:
            vm = min(vm, 63)
            if vm < len(self.vm):
                self.vm = self.vm[len(self.vm) - vm:] if vm > 0 else []
            parts.append('vmcnt(%d)' % vm)
        if lgkm is not None:
            lgkm = min(lgkm, 15)
            if lgkm < len(self.lg):
                self.lg = self.lg[len(self.lg) - lgkm:] if lgkm > 0 else []
            parts.append('lgkmcnt(%d)' % lgkm)
        if parts:
            i = classify('s_waitcnt', parts, '')
            self.out.append('    s_waitcnt ' + ' '.join(parts))
            self.hist.append((i, 1))

    def vm_pending(self):
        return len(self.vm)

    def __call__(self, op, *ops, mods='', cmt=None):
        ops = [str(o) for o in ops]
        c = classify(op, ops, mods)
        for f, n in c.defs | c.uses:
            if f == 'v': self.maxv = max(self.maxv, n)
            elif f == 'a': self.maxa = max(self.maxa, n)
            elif f == 's' and n < 102: self.maxs = max(self.maxs, n)
        if self.auto:
            self._autowait(c)
        self._hazard(c)
        line = '    ' + op + (' ' + ', '.join(ops) if ops else '') + (' ' + mods if mods else '')
        if cmt:
            line += '   ; ' + cmt
        self.out.append(line)
        slots = 1
        if op == 's_nop':
            slots = int(ops[0]) + 1
        self.hist.append((c, slots))
        if len(self.hist) > 64:
            self.hist = self.hist[-48:]
        if c.kind in ('vmem', 'vmem_lds', 'vmem_store'):
            self.vm.append(set(c.defs))
            if len(self.vm) > 64:
                pass
        elif c.kind == 'ds':
            self.lg.append(('ds', set(c.defs)))
        elif c.kind == 'smem':
            self.lg.append(('smem', set(c.defs)))
        if op.startswith('s_cbranch') or op == 's_branch':
            pass
        return c

    def text(self):
        return '\n'.join(self.out) + '\n'

def R(i, n=1):
    if i >= 256:
        f, b = 'a', i - 256
    else:
        f, b = 'v', i
        assert i + n <= 256, (i, n)
    if n == 1:
        return '%s%d' % (f, b)
    assert b % 2 == 0, (i, n)
    return '%s[%d:%d]' % (f, b, b + n - 1)

def S(i, n=1):
    if n == 1:
        return 's%d' % i
    return 's[%d:%d]' % (i, i + n - 1)
```

```python
S_TOK = 2048; D = 640; F = 1536; H = 32; DH = 20
KSQ = 41
WQKVP = 0
WQKVP_SZ = 32 * KSQ * 2 * 1024
W1P = WQKVP + WQKVP_SZ
W1P_SZ = 16 * KSQ * 3 * 1024
WOP = W1P + W1P_SZ
WOP_SZ = 8 * 20 * 5 * 1024
W2P = WOP + WOP_SZ
W2P_SZ = 8 * 48 * 5 * 1024
XA = W2P + W2P_SZ
X_SZ = 64 * 80 * 512
XB = XA + X_SZ
STA = XB + X_SZ
ST_SZ = 64 * 8 * 256
STB = STA + ST_SZ
OB = STB + ST_SZ
HB = OB + X_SZ
HB_SZ = 64 * 192 * 512
KVB = HB + HB_SZ
KV_K1 = 0
KV_K2 = 8192
KV_V = 8192 + 2048
KV_SZ = KV_V + 16384
QB = KVB + 256 * KV_SZ
Q_SZ = 1536
WS_END = QB + 256 * 8 * Q_SZ
WS_BYTES = 268435456

def kmap_x(c, j):
    return 32 * (c >> 2) + 4 * (c & 3) + (j & 3) + 16 * (j >> 2)
def kmap_h(c, j):
    return 32 * (c >> 2) + 16 * ((c >> 1) & 1) + 4 * (c & 1) + (j & 3) + 8 * (j >> 2)
def kmap_o(c, j):
    hp, u = divmod(c, 5)
    if u < 4:
        return 20 * (2 * hp + (u >> 1)) + 4 * (u & 1) + (j & 3) + 8 * (j >> 2)
    return 20 * (2 * hp + (j >> 2)) + 16 + (j & 3)
def qkv_col(h, T, f):
    if T == 0:
        if f < 20: return h * 20 + f
        if f < 24: return h * 20 + 640 + f - 4
        return h * 20 + 1280 + f - 24
    if f < 16: return h * 20 + 640 + f
    if f < 28: return h * 20 + 1280 + f - 8
    return None
if __name__ == '__main__':
    for k, v in list(globals().items()):
        if isinstance(v, int): print(k, v, hex(v))
    assert sorted(kmap_x(c, j) for c in range(80) for j in range(8)) == list(range(640))
    assert sorted(kmap_o(c, j) for c in range(80) for j in range(8)) == list(range(640))
    assert sorted(kmap_h(c, j) for c in range(192) for j in range(8)) == list(range(1536))
    assert all((c * 205) >> 10 == c // 5 for c in range(80))
    assert all((c * 171) >> 9 == c // 3 for c in range(48))
```

```python
import sys
from asmdsl import Asm, R, S
from layout import *

NAME = 'interleave_layers__sliding_block__dense_activation_squared_relu__prompt'
ARG = dict(x=0, wqkv=8, wo=16, bx=24, w1=32, b1=40, w2=48, b2=56, out=64, dbg=72, ws=80)
NBYTES = dict(x=2048*640*2, wqkv=640*1920*2, wo=640*640*2, w1=640*1536*2, b1=1536*2, w2=1536*640*2,
              b2=640*2, out=2048*640*2, ws=WS_BYTES, dbg=256)
ONES_BF16 = 0x3F803F80
OOB = 0x7FFF0000

kernels = []

def begin(a, label):
    a.raw('.p2align 8')
    a.raw('.globl %s' % label)
    a.raw('.type %s,@function' % label)
    a.raw('%s:' % label)
    a.reset_state()

def end(a, label):
    a('s_endpgm')
    nv = a.maxv + 1
    acc = (nv + 3) // 4 * 4
    acc = max(acc, 4)
    if a.maxa >= 0:
        acc = 256 if nv > 252 else acc
        tot = acc + a.maxa + 1
    else:
        tot = nv
    kernels.append((label, tot, acc, a.maxs + 1))

def load_srds(a, items):
    for n, s in items:
        a('s_load_dwordx2', S(s, 2), 's[0:1]', ARG[n])
    for n, s in items:
        a('s_mov_b32', S(s + 2), hex(NBYTES[n]))
        a('s_mov_b32', S(s + 3), '0x20000')

def exit_if_ge(a, n, lab):
    a('s_cmp_ge_u32', 's2', n)
    a('s_cbranch_scc1', lab)

def bf16_round(a, dst, src, tmp=None):
    a('v_cvt_pk_bf16_f32', dst, src, src)
    a('v_and_b32', dst, '0xffff0000', dst)

def gen_prep(a):
    L = 'prep_kernel'
    begin(a, L)
    exit_if_ge(a, 244, L + '_end')
    load_srds(a, [('ws', 4), ('wqkv', 8), ('b1', 12), ('w1', 16), ('x', 20), ('wo', 24), ('w2', 28)])
    a('v_lshrrev_b32', 'v1', 6, 'v0')
    a('v_and_b32', 'v0', 63, 'v0')
    a('v_readfirstlane_b32', 's3', 'v1')
    a('v_lshlrev_b32', 'v2', 4, 'v0')
    a('v_and_b32', 'v3', 31, 'v0')
    a('v_lshrrev_b32', 'v4', 5, 'v0')
    a('s_mov_b32', 's40', hex(ONES_BF16))
    a.wait(lgkm=0)
    a('s_cmp_ge_u32', 's2', 176)
    a('s_cbranch_scc1', L + '_D')
    a('s_cmp_ge_u32', 's2', 112)
    a('s_cbranch_scc1', L + '_C')
    a('s_cmp_ge_u32', 's2', 64)
    a('s_cbranch_scc1', L + '_B')
    a('s_lshr_b32', 's33', 's2', 1)
    a('s_mul_i32', 's33', 's33', 20)
    a('s_and_b32', 's34', 's2', 1)
    a('s_cmp_eq_u32', 's34', 0)
    a('s_cbranch_scc0', L + '_A1')
    a('v_mov_b32', 'v5', 0)
    a('v_mov_b32', 'v6', 636)
    a('v_cmp_le_u32', 'vcc', 20, 'v3')
    a('v_cndmask_b32', 'v5', 'v5', 'v6', 'vcc')
    a('v_mov_b32', 'v6', 1256)
    a('v_cmp_le_u32', 'vcc', 24, 'v3')
    a('v_cndmask_b32', 'v5', 'v5', 'v6', 'vcc')
    a('s_branch', L + '_A2')
    a.label(L + '_A1')
    a('v_mov_b32', 'v5', 640)
    a('v_mov_b32', 'v6', 1272)
    a('v_cmp_le_u32', 'vcc', 16, 'v3')
    a('v_cndmask_b32', 'v5', 'v5', 'v6', 'vcc')
    a('v_mov_b32', 'v6', hex(OOB // 2))
    a('v_cmp_le_u32', 'vcc', 28, 'v3')
    a('v_cndmask_b32', 'v5', 'v5', 'v6', 'vcc')
    a.label(L + '_A2')
    a('v_add3_u32', 'v5', 'v5', 'v3', 's33')
    a('s_mov_b32', 's35', 3840)
    a('s_lshr_b32', 's36', 's2', 1)
    a('s_mul_i32', 's36', 's36', KSQ * 2048)
    a('s_lshl_b32', 's37', 's34', 10)
    a('s_add_u32', 's36', 's36', 's37')
    a('s_add_u32', 's36', 's36', WQKVP)
    a('s_mov_b32', 's37', 2048)
    a('v_mov_b32', 'v7', 0)
    a('s_branch', L + '_AB')
    a.label(L + '_B')
    a('s_sub_u32', 's33', 's2', 64)
    a('s_lshl_b32', 's34', 's33', 5)
    a('v_add_u32', 'v5', 's34', 'v3')
    a('v_lshlrev_b32', 'v6', 1, 'v5')
    a('buffer_load_ushort', 'v7', 'v6', 's[12:15]', 0, mods='offen')
    a('s_mov_b32', 's35', 3072)
    a('s_mul_i32', 's36', 's33', 171)
    a('s_lshr_b32', 's36', 's36', 9)
    a('s_mul_i32', 's37', 's36', 3)
    a('s_sub_u32', 's37', 's33', 's37')
    a('s_mul_i32', 's36', 's36', KSQ * 3072)
    a('s_lshl_b32', 's37', 's37', 10)
    a('s_add_u32', 's36', 's36', 's37')
    a('s_add_u32', 's36', 's36', W1P)
    a('s_mov_b32', 's37', 3072)
    a('s_mov_b32', 's8', 's16')
    a('s_mov_b32', 's9', 's17')
    a('s_mov_b32', 's10', hex(NBYTES['w1']))
    a.wait(vm=0)
    a.label(L + '_AB')
    a('v_lshlrev_b32', 'v5', 1, 'v5')
    a('v_lshlrev_b32', 'v6', 2, 'v4')
    a('v_mul_lo_u32', 'v6', 'v6', 's35')
    a('v_add_u32', 'v8', 'v5', 'v6')
    a('s_lshl_b32', 's38', 's35', 4)
    for j in range(1, 4):
        a('v_add_u32', R(8 + j), 's35', R(8 + j - 1))
    for j in range(4, 8):
        a('v_add_u32', R(8 + j), 's38', R(8 + j - 4))
    a('s_mul_i32', 's39', 's3', 5)
    for i in range(5):
        a('s_add_u32', 's41', 's39', i)
        a('s_lshr_b32', 's42', 's41', 1)
        a('s_lshl_b32', 's42', 's42', 5)
        a('s_and_b32', 's43', 's41', 1)
        a('s_lshl_b32', 's43', 's43', 3)
        a('s_add_u32', 's42', 's42', 's43')
        a('s_mul_i32', S(44 + i), 's42', 's35')
        a('s_add_u32', 's41', 's41', 1)
        a('s_mul_i32', S(50 + i), 's41', 's37')
        a('s_add_u32', S(50 + i), S(50 + i), 's36')
        for j in range(8):
            a('buffer_load_ushort', R(16 + 8 * i + j), R(8 + j), 's[8:11]', S(44 + i), mods='offen')
    a('v_mov_b32', 'v60', 0)
    for i in range(5):
        for q in range(4):
            a('v_lshl_or_b32', R(64 + 4 * i + q), R(16 + 8 * i + 2 * q + 1), 16, R(16 + 8 * i + 2 * q))
        a('buffer_store_dwordx4', R(64 + 4 * i, 4), 'v2', 's[4:7]', S(50 + i), mods='offen')
        for q in range(4):
            a('v_dot2_f32_bf16', 'v60', R(64 + 4 * i + q), 's40', 'v60')
    a('s_lshl_b32', 's41', 's3', 8)
    a('v_lshl_add_u32', 'v61', 'v0', 2, 's41')
    a('s_nop', 2)
    a('ds_write_b32', 'v61', 'v60')
    a.wait(lgkm=0)
    a('s_barrier')
    a('s_cmp_lg_u32', 's3', 0)
    a('s_cbranch_scc1', L + '_end')
    a('v_lshlrev_b32', 'v61', 2, 'v3')
    for q in range(16):
        a('ds_read_b32', R(16 + q), 'v61', mods='offset:%d' % (q * 128))
    for q in range(1, 16):
        a('v_add_f32', 'v16', 'v16', R(16 + q))
    a('v_sub_f32', 'v16', 0, 'v16')
    a('v_cvt_pk_bf16_f32', 'v17', 'v16', 'v16')
    a('v_and_b32', 'v17', '0xffff0000', 'v17')
    a('v_sub_f32', 'v18', 'v16', 'v17')
    a('v_cvt_pk_bf16_f32', 'v19', 'v18', 'v18')
    a('v_and_b32', 'v19', '0xffff0000', 'v19')
    a('v_sub_f32', 'v20', 'v18', 'v19')
    a('v_cvt_pk_bf16_f32', 'v21', 'v20', 'v20')
    a('v_and_b32', 'v21', '0xffff', 'v21')
    a('v_lshrrev_b32', 'v17', 16, 'v17')
    a('v_or_b32', 'v24', 'v17', 'v19')
    a('v_lshl_or_b32', 'v25', 'v7', 16, 'v21')
    a('v_mov_b32', 'v26', 0)
    a('v_mov_b32', 'v27', 0)
    a('v_cmp_eq_u32', 'vcc', 0, 'v4')
    a('v_cndmask_b32', 'v24', 0, 'v24', 'vcc')
    a('v_cndmask_b32', 'v25', 0, 'v25', 'vcc')
    a('buffer_store_dwordx4', 'v[24:27]', 'v2', 's[4:7]', 's36', mods='offen')
    a('s_endpgm')
    a.vm = []; a.lg = []
    a.label(L + '_C')
    a('s_sub_u32', 's33', 's2', 112)
    a('s_mul_i32', 's34', 's33', 32 * 1280)
    a('v_mul_u32_u24', 'v5', 1280, 'v3')
    a('v_lshl_add_u32', 'v5', 'v4', 3, 'v5')
    a('v_add_u32', 'v5', 's34', 'v5')
    a('s_mul_i32', 's39', 's3', 5)
    a('s_mul_i32', 's36', 's33', 80 * 512)
    a('s_add_u32', 's36', 's36', XA)
    for i in range(5):
        a('s_add_u32', 's41', 's39', i)
        a('s_lshr_b32', 's42', 's41', 1)
        a('s_lshl_b32', 's42', 's42', 6)
        a('s_and_b32', 's43', 's41', 1)
        a('s_lshl_b32', 's43', 's43', 4)
        a('s_add_u32', S(44 + i), 's42', 's43')
        a('s_lshl_b32', S(50 + i), 's41', 10)
        a('s_add_u32', S(50 + i), S(50 + i), 's36')
        a('buffer_load_dwordx2', R(16 + 4 * i, 2), 'v5', 's[20:23]', S(44 + i), mods='offen')
        a('buffer_load_dwordx2', R(18 + 4 * i, 2), 'v5', 's[20:23]', S(44 + i), mods='offen offset:32')
    a('v_mov_b32', 'v60', 0)
    a('v_mov_b32', 'v61', 0)
    for i in range(5):
        a('buffer_store_dwordx4', R(16 + 4 * i, 4), 'v2', 's[4:7]', S(50 + i), mods='offen')
        for q in range(4):
            a('v_dot2_f32_bf16', 'v60', R(16 + 4 * i + q), 's40', 'v60')
            a('v_dot2_f32_bf16', 'v61', R(16 + 4 * i + q), R(16 + 4 * i + q), 'v61')
    a('s_nop', 3)
    a('v_mov_b32', 'v62', 'v60')
    a('v_mov_b32', 'v63', 'v61')
    a('v_permlane32_swap_b32', 'v60', 'v62')
    a('v_permlane32_swap_b32', 'v61', 'v63')
    a('v_add_f32', 'v60', 'v60', 'v62')
    a('v_add_f32', 'v61', 'v61', 'v63')
    a('s_lshl_b32', 's41', 's33', 3)
    a('s_add_u32', 's41', 's41', 's3')
    a('s_lshl_b32', 's41', 's41', 8)
    a('s_add_u32', 's41', 's41', STA)
    a('v_lshlrev_b32', 'v6', 3, 'v3')
    a('buffer_store_dwordx2', 'v[60:61]', 'v6', 's[4:7]', 's41', mods='offen')
    a('s_endpgm')
    a.vm = []; a.lg = []
    a.label(L + '_D')
    a('s_sub_u32', 's33', 's2', 176)
    a('s_lshl_b32', 's33', 's33', 3)
    a('s_add_u32', 's33', 's33', 's3')
    a('v_and_b32', 'v3', 15, 'v0')
    a('v_lshrrev_b32', 'v4', 4, 'v0')
    a('s_cmp_ge_u32', 's33', 160)
    a('s_cbranch_scc1', L + '_D2')
    a('s_mul_i32', 's34', 's33', 205)
    a('s_lshr_b32', 's34', 's34', 12)
    a('s_mul_i32', 's35', 's34', 20)
    a('s_sub_u32', 's35', 's33', 's35')
    a('s_lshl_b32', 's36', 's35', 2)
    a('v_add_u32', 'v5', 's36', 'v4')
    a('v_mul_u32_u24', 'v6', 205, 'v5')
    a('v_lshrrev_b32', 'v6', 10, 'v6')
    a('v_mul_u32_u24', 'v7', 5, 'v6')
    a('v_sub_u32', 'v7', 'v5', 'v7')
    a('v_mul_u32_u24', 'v6', 40, 'v6')
    a('v_lshrrev_b32', 'v8', 1, 'v7')
    a('v_mul_u32_u24', 'v8', 20, 'v8')
    a('v_and_b32', 'v9', 1, 'v7')
    a('v_lshl_add_u32', 'v8', 'v9', 2, 'v8')
    a('v_mov_b32', 'v9', 8)
    a('v_cmp_eq_u32', 'vcc', 4, 'v7')
    a('v_mov_b32', 'v10', 16)
    a('v_cndmask_b32', 'v8', 'v8', 'v10', 'vcc')
    a('v_mov_b32', 'v10', 20)
    a('v_cndmask_b32', 'v9', 'v9', 'v10', 'vcc')
    a('v_add_u32', 'v8', 'v8', 'v6')
    a('s_mul_i32', 's36', 's33', 5120)
    a('s_add_u32', 's36', 's36', WOP)
    a('s_mov_b32', 's8', 's24')
    a('s_mov_b32', 's9', 's25')
    a('s_mov_b32', 's10', hex(NBYTES['wo']))
    a('s_branch', L + '_D3')
    a.label(L + '_D2')
    a('s_sub_u32', 's33', 's33', 160)
    a('s_mul_i32', 's34', 's33', 171)
    a('s_lshr_b32', 's34', 's34', 13)
    a('s_mul_i32', 's35', 's34', 48)
    a('s_sub_u32', 's35', 's33', 's35')
    a('s_lshl_b32', 's36', 's35', 5)
    a('v_lshrrev_b32', 'v8', 1, 'v4')
    a('v_lshlrev_b32', 'v8', 4, 'v8')
    a('v_and_b32', 'v9', 1, 'v4')
    a('v_lshl_add_u32', 'v8', 'v9', 2, 'v8')
    a('v_add_u32', 'v8', 's36', 'v8')
    a('v_mov_b32', 'v9', 8)
    a('s_mul_i32', 's36', 's33', 5120)
    a('s_add_u32', 's36', 's36', W2P)
    a('s_mov_b32', 's8', 's28')
    a('s_mov_b32', 's9', 's29')
    a('s_mov_b32', 's10', hex(NBYTES['w2']))
    a.label(L + '_D3')
    a('s_mul_i32', 's37', 's34', 160)
    a('v_mul_u32_u24', 'v10', 1280, 'v8')
    a('v_lshl_add_u32', 'v10', 'v3', 1, 'v10')
    a('v_add_u32', 'v10', 's37', 'v10')
    a('v_mul_u32_u24', 'v11', 1280, 'v9')
    a('v_add_u32', 'v11', 'v10', 'v11')
    for i in range(5):
        for j in range(8):
            a('buffer_load_ushort', R(16 + 8 * i + j), R(10 + (j >> 2)), 's[8:11]', 0,
              mods='offen offset:%d' % ((j & 3) * 1280 + 32 * i))
    for i in range(5):
        for q in range(4):
            a('v_lshl_or_b32', R(64 + 4 * i + q), R(16 + 8 * i + 2 * q + 1), 16, R(16 + 8 * i + 2 * q))
        if i == 4:
            a('s_add_u32', 's36', 's36', 4096)
            a('buffer_store_dwordx4', R(64 + 4 * i, 4), 'v2', 's[4:7]', 's36', mods='offen')
        else:
            a('buffer_store_dwordx4', R(64 + 4 * i, 4), 'v2', 's[4:7]', 's36', mods='offen offset:%d' % (1024 * i))
    a.label(L + '_end')
    end(a, L)
    return (L, 256, 512, 2048)

assert all((g * 205) >> 12 == g // 20 for g in range(160))
assert all((g * 171) >> 13 == g // 48 for g in range(384))

def stats_to_aug(a, st, aug, rstd, tmp):
    a('v_add_f32', R(st), R(st), R(st + 2))
    a('v_add_f32', R(st + 1), R(st + 1), R(st + 3))
    a('v_add_f32', R(st + 4), R(st + 4), R(st + 6))
    a('v_add_f32', R(st + 5), R(st + 5), R(st + 7))
    a('v_add_f32', R(st), R(st), R(st + 4))
    a('v_add_f32', R(st + 1), R(st + 1), R(st + 5))
    a('v_mov_b32', R(st + 2), R(st))
    a('v_mov_b32', R(st + 3), R(st + 1))
    a('v_permlane32_swap_b32', R(st), R(st + 2))
    a('v_permlane32_swap_b32', R(st + 1), R(st + 3))
    a('v_add_f32', R(st), R(st), R(st + 2))
    a('v_add_f32', R(st + 1), R(st + 1), R(st + 3))
    inv = hex(0x3ACCCCCD)
    a('v_mul_f32', R(st), inv, R(st))
    a('v_mul_f32', R(st + 1), inv, R(st + 1))
    a('v_fma_f32', R(st + 1), '-' + R(st), R(st), R(st + 1))
    a('v_max_f32', R(st + 1), 0, R(st + 1))
    bf16_round(a, R(st + 1), R(st + 1))
    a('v_add_f32', R(st + 1), hex(0x3727C5AC), R(st + 1))
    bf16_round(a, R(st + 1), R(st + 1))
    a('v_sqrt_f32', R(st + 1), R(st + 1))
    a('v_cvt_pk_bf16_f32', R(aug), R(st), R(st))
    a('v_cvt_pk_bf16_f32', R(aug + 1), R(st), R(st + 1))
    a('v_mov_b32', R(aug + 2), 0)
    a('v_mov_b32', R(aug + 3), 0)
    a('v_and_b32', R(st + 1), '0xffff0000', R(aug + 1))
    a('v_rcp_f32', R(rstd), R(st + 1))

def gen_qkv(a, label='qkv_kernel'):
    L = label
    begin(a, L)
    exit_if_ge(a, 256, L + '_end')
    load_srds(a, [('ws', 4)])
    a('v_lshrrev_b32', 'v1', 6, 'v0')
    a('v_and_b32', 'v0', 63, 'v0')
    a('v_readfirstlane_b32', 's3', 'v1')
    a('v_lshlrev_b32', 'v1', 4, 'v0')
    a('v_lshlrev_b32', 'v2', 3, 'v0')
    a('s_and_b32', 's16', 's2', 7)
    a('s_lshr_b32', 's17', 's2', 3)
    a('s_lshl_b32', 's18', 's16', 3)
    a('s_add_u32', 's18', 's18', 's3')
    a('s_lshl_b32', 's19', 's18', 11)
    a('s_add_u32', 's19', 's19', STA)
    a('s_mul_i32', 's20', 's3', 11 * 1024)
    a('s_mul_i32', 's21', 's17', KSQ * 2048)
    a('s_add_u32', 's21', 's21', 's20')
    a('s_add_u32', 's21', 's21', WQKVP)
    a('s_mul_i32', 's22', 's18', 40960)
    a('s_add_u32', 's22', 's22', XA)
    a.wait(lgkm=0)
    ST = 8
    for i in range(4):
        a('buffer_load_dwordx2', R(ST + 2 * i, 2), 'v2', 's[4:7]', 's19', mods='offen offset:%d' % (512 * i))
    for i in range(11):
        if i % 4 == 0:
            a('s_mov_b32', 'm0', 's20')
        a('buffer_load_dwordx4', 'v1', 's[4:7]', 's21', mods='offen offset:%d lds' % (1024 * (i % 4)))
        if i % 4 == 3:
            a('s_add_u32', 's20', 's20', 4096)
            a('s_add_u32', 's21', 's21', 4096)
    XR = 64
    for s in range(40):
        a('buffer_load_dwordx4', R(XR + 4 * s, 4), 'v1', 's[4:7]', 's22', mods='offen offset:%d' % (1024 * (s % 4)))
        if s % 4 == 3:
            a('s_add_u32', 's22', 's22', 4096)
    AUG = 4; RSTD = 3
    stats_to_aug(a, ST, AUG, RSTD, 16)
    a('v_add_u32', 'v16', 0xA000, 'v1')
    a.wait(vm=40)
    a('s_barrier')
    WR = 32
    ACC = 224
    def wread(s):
        for T in range(2):
            off = (s * 2 + T) * 1024
            base = 'v1'
            if off >= 40960:
                off -= 40960; base = 'v16'
            a('ds_read_b128', R(WR + 8 * (s % 4) + 4 * T, 4), base, mods='offset:%d' % off)
    for s in range(3):
        wread(s)
    for s in range(KSQ):
        if s + 3 < KSQ:
            wread(s + 3)
        xf = R(AUG, 4) if s == 0 else R(XR + 4 * (s - 1), 4)
        for T in range(2):
            c = '0' if s == 0 else R(ACC + 16 * T, 16)
            a('v_mfma_f32_32x32x16_bf16', R(ACC + 16 * T, 16), R(WR + 8 * (s % 4) + 4 * T, 4), xf, c)
    a('v_lshrrev_b32', 'v17', 5, 'v0')
    a('v_and_b32', 'v18', 31, 'v0')
    a('v_cmp_eq_u32', 's[30:31]', 1, 'v17')
    a('s_lshl_b32', 's23', 's16', 5)
    a('s_add_u32', 's23', 's23', 's17')
    a('s_mul_i32', 's24', 's23', KV_SZ)
    a('s_add_u32', 's24', 's24', KVB)
    a('s_lshl_b32', 's25', 's23', 3)
    a('s_add_u32', 's25', 's25', 's3')
    a('s_mul_i32', 's25', 's25', Q_SZ)
    a('s_add_u32', 's25', 's25', QB)
    a('s_lshl_b32', 's26', 's3', 10)
    a('s_add_u32', 's26', 's26', 's24')
    a('s_lshl_b32', 's27', 's3', 8)
    a('s_add_u32', 's27', 's27', 's24')
    a('s_add_u32', 's27', 's27', KV_K2)
    a('s_lshl_b32', 's28', 's3', 11)
    a('s_add_u32', 's28', 's28', 's24')
    a('s_add_u32', 's28', 's28', KV_V)
    a('v_lshlrev_b32', 'v19', 3, 'v18')
    a('v_mov_b32', 'v20', hex(OOB))
    a('v_cndmask_b32', 'v19', 'v20', 'v19', 's[30:31]')
    a('v_lshlrev_b32', 'v21', 6, 'v18')
    a('v_lshl_add_u32', 'v21', 'v17', 3, 'v21')
    for r in range(32):
        a('v_mul_f32', R(ACC + r), R(RSTD), R(ACC + r))
    P = 64
    for q in range(16):
        a('v_cvt_pk_bf16_f32', R(P + q), R(ACC + 2 * q), R(ACC + 2 * q + 1))
    a('v_mov_b32', 'v22', hex(ONES_BF16))
    a('v_cndmask_b32', R(P + 14), R(P + 14), 'v22', 's[30:31]')
    a('v_cndmask_b32', R(P + 15), R(P + 15), 'v22', 's[30:31]')
    a('buffer_store_dwordx4', R(P, 4), 'v1', 's[4:7]', 's25', mods='offen')
    a('buffer_store_dwordx2', R(P + 4, 2), 'v2', 's[4:7]', 's25', mods='offen offset:1024')
    a('buffer_store_dwordx2', R(P + 4, 2), 'v19', 's[4:7]', 's27', mods='offen')
    a('buffer_store_dwordx2', R(P + 6, 2), 'v21', 's[4:7]', 's28', mods='offen')
    a('buffer_store_dwordx4', R(P + 8, 4), 'v1', 's[4:7]', 's26', mods='offen')
    a('buffer_store_dwordx2', R(P + 12, 2), 'v21', 's[4:7]', 's28', mods='offen offset:16')
    a('buffer_store_dwordx2', R(P + 14, 2), 'v21', 's[4:7]', 's28', mods='offen offset:32')
    a.label(L + '_end')
    end(a, L)
    return (L, 256, 512, 88 * 1024)

import math, struct
def f32bits(x):
    return struct.unpack('<I', struct.pack('<f', x))[0]

def gen_att(a, label='att_kernel'):
    L = label
    begin(a, L)
    exit_if_ge(a, 256, L + '_end')
    load_srds(a, [('ws', 4)])
    a('v_lshrrev_b32', 'v1', 6, 'v0')
    a('v_and_b32', 'v0', 63, 'v0')
    a('v_readfirstlane_b32', 's3', 'v1')
    a('v_lshlrev_b32', 'v1', 4, 'v0')
    a('v_lshlrev_b32', 'v2', 3, 'v0')
    a('v_lshlrev_b32', 'v3', 2, 'v0')
    a('s_and_b32', 's16', 's2', 7)
    a('s_lshr_b32', 's17', 's2', 3)
    a('s_lshl_b32', 's23', 's16', 5)
    a('s_add_u32', 's23', 's23', 's17')
    a('s_mul_i32', 's24', 's23', KV_SZ)
    a('s_add_u32', 's24', 's24', KVB)
    a('s_sub_u32', 's29', 's24', 32 * KV_SZ)
    a('s_cmp_eq_u32', 's16', 0)
    a('s_cselect_b32', 's38', hex(OOB), 0)
    a('v_add_u32', 'v58', 's38', 'v1')
    a('v_add_u32', 'v59', 's38', 'v3')
    a('s_lshl_b32', 's25', 's23', 3)
    a('s_add_u32', 's25', 's25', 's3')
    a('s_mul_i32', 's25', 's25', Q_SZ)
    a('s_add_u32', 's25', 's25', QB)
    a.wait(lgkm=0)
    LK1, LK2, LV = 0, 16384, 20480
    a('s_lshl_b32', 's30', 's3', 10)
    a('s_lshl_b32', 's31', 's3', 8)
    a('s_lshl_b32', 's32', 's3', 11)
    for p, img in ((1, 's24'), (0, 's29')):
        vo16, vo4 = ('v1', 'v3') if p else ('v58', 'v59')
        a('s_add_u32', 's33', 's30', LK1 + p * 8192)
        a('s_mov_b32', 'm0', 's33')
        a('s_add_u32', 's34', img, 's30')
        a('buffer_load_dwordx4', vo16, 's[4:7]', 's34', mods='offen lds')
        a('s_add_u32', 's33', 's31', LK2 + p * 2048)
        a('s_mov_b32', 'm0', 's33')
        a('s_add_u32', 's34', img, 's31')
        a('s_add_u32', 's34', 's34', KV_K2)
        a('buffer_load_dword', vo4, 's[4:7]', 's34', mods='offen lds')
        a('s_add_u32', 's33', 's32', LV + p * 16384)
        a('s_mov_b32', 'm0', 's33')
        a('s_add_u32', 's34', img, 's32')
        a('s_add_u32', 's34', 's34', KV_V)
        a('buffer_load_dwordx4', vo16, 's[4:7]', 's34', mods='offen lds')
        a('buffer_load_dwordx4', vo16, 's[4:7]', 's34', mods='offen offset:1024 lds')
    Q1, Q2 = 4, 8
    a('buffer_load_dwordx4', R(Q1, 4), 'v1', 's[4:7]', 's25', mods='offen')
    a('buffer_load_dwordx2', R(Q2, 2), 'v2', 's[4:7]', 's25', mods='offen offset:1024')
    a('v_lshrrev_b32', 'v60', 5, 'v0')
    a('v_and_b32', 'v61', 31, 'v0')
    a('v_cmp_eq_u32', 's[36:37]', 0, 'v60')
    a('v_add_u32', 'v62', 's30', 'v1')
    a('v_lshlrev_b32', 'v63', 3, 'v61')
    a('v_add_u32', 'v63', 's31', 'v63')
    a('v_bfe_u32', 'v56', 'v0', 2, 2)
    a('v_lshl_add_u32', 'v56', 'v60', 2, 'v56')
    a('v_lshlrev_b32', 'v56', 6, 'v56')
    a('v_bfe_u32', 'v57', 'v0', 4, 1)
    a('v_lshl_add_u32', 'v56', 'v57', 5, 'v56')
    a('v_and_b32', 'v57', 3, 'v0')
    a('v_lshl_add_u32', 'v56', 'v57', 3, 'v56')
    a('v_add_u32', 'v56', 's32', 'v56')
    a('v_lshlrev_b32', 'v57', 2, 'v60')
    a('v_sub_u32', 'v57', 'v61', 'v57')
    MS = 40
    for r in range(16):
        a('v_cmp_le_i32', S(MS + 2 * r, 2), 8 * (r >> 2) + (r & 3), 'v57')
    a('v_mov_b32', R(Q2 + 2), 0)
    a('v_mov_b32', R(Q2 + 3), 0)
    KR = 12
    for i in range(3):
        a('v_mov_b32', R(KR + 8 * i + 6), 0)
        a('v_mov_b32', R(KR + 8 * i + 7), 0)
    a('v_cndmask_b32', R(Q2), 0, R(Q2), 's[36:37]')
    a('v_cndmask_b32', R(Q2 + 1), 0, R(Q2 + 1), 's[36:37]')
    a.wait(vm=0)
    a('s_barrier')
    SB = 64
    def kread(b):
        a('ds_read_b128', R(KR + 8 * (b % 3), 4), 'v62', mods='offset:%d' % (LK1 + b * 1024))
        a('ds_read_b64', R(KR + 8 * (b % 3) + 4, 2), 'v63', mods='offset:%d' % (LK2 + b * 256))
    kread(0); kread(1)
    for b in range(9):
        if b + 2 < 9:
            kread(b + 2)
        a('v_mfma_f32_32x32x16_bf16', R(SB + 16 * b, 16), R(KR + 8 * (b % 3), 4), R(Q1, 4), 0)
        a('v_mfma_f32_32x32x16_bf16', R(SB + 16 * b, 16), R(KR + 8 * (b % 3) + 4, 4), R(Q2, 4), R(SB + 16 * b, 16))
    a('s_sub_u32', 's33', 8, 's3')
    a('s_cmp_eq_u32', 's16', 0)
    a('s_cselect_b32', 's33', 's33', 0)
    a.fence_hazards()
    for b in range(8):
        a('s_cmp_gt_u32', 's33', b)
        a('s_cbranch_scc0', L + '_hv')
        for r in range(16):
            a('v_mov_b32', R(SB + 16 * b + r), '0xff800000')
    a.label(L + '_hv')
    VR = 36
    def vread(b):
        for hf in range(2):
            for q in range(2):
                a('ds_read_b64_tr_b16', R(VR + 8 * (b % 2) + 4 * hf + 2 * q, 2), 'v56',
                  mods='offset:%d' % (LV + b * 2048 + hf * 1024 + q * 512))
    for r in range(16):
        a('v_cndmask_b32', R(SB + r), R(SB + r), R(SB + 128 + r), S(MS + 2 * r, 2))
    M0_, M1_ = 52, 53
    a('v_max3_f32', R(M0_), R(SB), R(SB + 1), R(SB + 2))
    a('v_max3_f32', R(M1_), R(SB + 3), R(SB + 4), R(SB + 5))
    idx = 6
    tog = 0
    while idx < 128:
        m = M0_ if tog == 0 else M1_
        a('v_max3_f32', R(m), R(m), R(SB + idx), R(SB + idx + 1))
        idx += 2; tog ^= 1
    a('v_max_f32', R(M0_), R(M0_), R(M1_))
    a('v_mov_b32', R(M1_), R(M0_))
    a('v_permlane32_swap_b32', R(M0_), R(M1_))
    a('v_max_f32', R(M0_), R(M0_), R(M1_))
    c = (20 ** -0.5) * math.log2(math.e)
    a('s_mov_b32', 's35', hex(f32bits(c)))
    a('v_mul_f32', R(M0_), 's35', R(M0_))
    a('v_sub_f32', R(M0_), 0, R(M0_))
    OA = 208
    order = [1, 2, 3, 4, 5, 6, 7, 0]
    vread(1)
    first = True
    for n, b in enumerate(order):
        base = SB + 16 * b
        if b != 0:
            nxt = order[n + 1]
            vread(nxt if nxt != 0 else 8)
        for r in range(16):
            a('v_fma_f32', R(base + r), R(base + r), 's35', R(M0_))
        for r in range(16):
            a('v_exp_f32', R(base + r), R(base + r))
        if b != 0:
            for q in range(8):
                a('v_cvt_pk_bf16_f32', R(base + q), R(base + 2 * q), R(base + 2 * q + 1))
            for hf in range(2):
                a('v_mfma_f32_32x32x16_bf16', R(OA, 16), R(VR + 8 * (b % 2) + 4 * hf, 4), R(base + 4 * hf, 4),
                  '0' if first else R(OA, 16))
                first = False
        else:
            d = SB + 128
            for r in range(16):
                a('v_cndmask_b32', R(d + r), 0, R(base + r), S(MS + 2 * r, 2))
            for q in range(8):
                a('v_cvt_pk_bf16_f32', R(d + q), R(d + 2 * q), R(d + 2 * q + 1))
            for hf in range(2):
                a('v_mfma_f32_32x32x16_bf16', R(OA, 16), R(VR + 8 * (8 % 2) + 4 * hf, 4), R(d + 4 * hf, 4), R(OA, 16))
            for hf in range(2):
                for q in range(2):
                    a('ds_read_b64_tr_b16', R(VR + 8 + 4 * hf + 2 * q, 2), 'v56',
                      mods='offset:%d' % (LV + hf * 1024 + q * 512))
            for r in range(16):
                a('v_cndmask_b32', R(base + r), R(base + r), 0, S(MS + 2 * r, 2))
            for q in range(8):
                a('v_cvt_pk_bf16_f32', R(base + q), R(base + 2 * q), R(base + 2 * q + 1))
            for hf in range(2):
                a('v_mfma_f32_32x32x16_bf16', R(OA, 16), R(VR + 8 + 4 * hf, 4), R(base + 4 * hf, 4), R(OA, 16))
    a('s_lshl_b32', 's18', 's16', 3)
    a('s_add_u32', 's18', 's18', 's3')
    a('s_mul_i32', 's18', 's18', 80)
    a('s_lshr_b32', 's19', 's17', 1)
    a('s_mul_i32', 's19', 's19', 5)
    a('s_add_u32', 's18', 's18', 's19')
    a('s_lshl_b32', 's18', 's18', 9)
    a('s_add_u32', 's18', 's18', OB)
    a('s_and_b32', 's19', 's17', 1)
    a('s_lshl_b32', 's20', 's19', 10)
    a('s_add_u32', 's20', 's20', 's18')
    a('s_lshl_b32', 's21', 's19', 3)
    a('s_add_u32', 's21', 's21', 's18')
    a('v_mov_b32', 'v54', hex(OOB))
    a('v_cndmask_b32', 'v54', 'v54', 'v1', 's[36:37]')
    a('v_mov_b32', 'v52', R(OA + 8))
    a('v_mov_b32', 'v53', R(OA + 8))
    a('v_permlane32_swap_b32', 'v52', 'v53')
    a('v_rcp_f32', 'v53', 'v53')
    for r in range(12):
        a('v_mul_f32', R(OA + r), 'v53', R(OA + r))
    for q in range(6):
        a('v_cvt_pk_bf16_f32', R(SB + q), R(OA + 2 * q), R(OA + 2 * q + 1))
    a('buffer_store_dwordx4', R(SB, 4), 'v1', 's[4:7]', 's20', mods='offen')
    a('buffer_store_dwordx2', R(SB + 4, 2), 'v54', 's[4:7]', 's21', mods='offen offset:2048')
    a.label(L + '_end')
    end(a, L)
    return (L, 256, 512, 52 * 1024)

def gen_n80(a, label, KS, ABUF, NC, WBUF, XIN, XOUT, STOUT, bias, final):
    L = label
    KW = KS // 4
    begin(a, L)
    exit_if_ge(a, 256, L + '_end')
    srds = [('ws', 4)]
    if bias: srds.append(('b2', 8))
    if final: srds.append(('out', 12))
    load_srds(a, srds)
    a('v_lshrrev_b32', 'v1', 6, 'v0')
    a('v_and_b32', 'v0', 63, 'v0')
    a('v_readfirstlane_b32', 's3', 'v1')
    a('v_lshlrev_b32', 'v1', 4, 'v0')
    a('v_and_b32', 'v14', 15, 'v0')
    a('v_lshrrev_b32', 'v15', 4, 'v0')
    a('v_lshlrev_b32', 'v2', 9, 'v15')
    a('v_lshl_add_u32', 'v2', 'v14', 4, 'v2')
    a('v_add_u32', 'v3', NC * 512, 'v2')
    a('s_and_b32', 's16', 's2', 7)
    a('s_lshr_b32', 's17', 's2', 3)
    a('s_and_b32', 's18', 's17', 3)
    a('s_lshr_b32', 's19', 's17', 2)
    a('s_lshl_b32', 's20', 's16', 3)
    a('s_lshl_b32', 's21', 's18', 1)
    a('s_add_u32', 's20', 's20', 's21')
    a('s_mul_i32', 's22', 's20', NC * 512)
    a('s_mul_i32', 's23', 's3', KW * 2048)
    a('s_add_u32', 's22', 's22', 's23')
    a('s_add_u32', 's22', 's22', ABUF)
    a('s_mul_i32', 's24', 's19', KS * 5120)
    a('s_mul_i32', 's23', 's3', KW * 5120)
    a('s_add_u32', 's24', 's24', 's23')
    a('s_add_u32', 's24', 's24', WBUF)
    a.wait(lgkm=0)
    ACC = 16
    NSLOT = min(KW, 8)
    def slot(s):
        k = s % NSLOT
        return 96 + 36 * k if k < 4 else 256 + 36 * (k - 4)
    wn = [0]
    def issue(s):
        b = slot(s)
        for i in range(5):
            n = wn[0]
            a('buffer_load_dwordx4', R(b + 4 * i, 4), 'v1', 's[4:7]', 's24', mods='offen offset:%d' % (1024 * (n & 3)))
            if n & 3 == 3:
                a('s_add_u32', 's24', 's24', 4096)
            wn[0] += 1
        for tt in range(4):
            a('buffer_load_dwordx4', R(b + 20 + 4 * tt, 4), 'v2' if tt < 2 else 'v3', 's[4:7]', 's22',
              mods='offen offset:%d' % ((tt & 1) * 256 + (s & 1) * 2048))
        if s & 1:
            a('s_add_u32', 's22', 's22', 4096)
    a('s_lshr_b32', 's25', 's3', 1)
    a('s_add_u32', 's25', 's25', 's20')
    a('s_mul_i32', 's26', 's25', 40960)
    a('s_and_b32', 's27', 's3', 1)
    a('s_lshl_b32', 's27', 's27', 8)
    a('s_add_u32', 's26', 's26', 's27')
    a('s_mul_i32', 's28', 's19', 5)
    for i in range(5):
        a('s_add_u32', 's29', 's28', i)
        a('s_lshr_b32', 's30', 's29', 1)
        a('s_lshl_b32', 's30', 's30', 11)
        a('s_and_b32', 's29', 's29', 1)
        a('s_lshl_b32', 's29', 's29', 3)
        a('s_add_u32', 's30', 's30', 's29')
        a('s_add_u32', S(32 + i), 's30', 's26')
    RES = 240; BI = 4
    nissue = min(KW, 7)
    for s in range(nissue):
        issue(s)
    def late_loads():
        for i in range(5):
            a('s_add_u32', 's30', S(32 + i), XIN)
            a('buffer_load_dwordx2', R(RES + 2 * i, 2), 'v2', 's[4:7]', 's30', mods='offen')
        if bias:
            a('s_mul_i32', 's30', 's19', 160)
            a('v_lshlrev_b32', 'v250', 3, 'v15')
            for i in range(5):
                a('buffer_load_dwordx2', R(BI + 2 * i, 2), 'v250', 's[8:11]', 's30', mods='offen offset:%d' % (32 * i))
    if nissue == KW:
        late_loads()
    for s in range(KW):
        b = slot(s)
        for tt in range(4):
            for i in range(5):
                acc = ACC + 20 * tt + 4 * i
                a('v_mfma_f32_16x16x32_bf16', R(acc, 4), R(b + 4 * i, 4), R(b + 20 + 4 * tt, 4),
                  '0' if s == 0 else R(acc, 4))
        if nissue < KW:
            issue(nissue)
            nissue += 1
            if nissue == KW:
                late_loads()
    a('s_mul_i32', 's31', 's3', 20480)
    a('v_add_u32', 'v251', 's31', 'v1')
    for tt in range(4):
        for i in range(5):
            a('ds_write_b128', 'v251', R(ACC + 20 * tt + 4 * i, 4), mods='offset:%d' % ((tt * 5 + i) * 1024))
    a.wait(lgkm=0)
    a('s_barrier')
    a('s_mul_i32', 's31', 's3', 5120)
    a('v_add_u32', 'v251', 's31', 'v1')
    a('v_add_u32', 'v252', 40960, 'v251')
    for src in range(4):
        for i in range(5):
            off = (src % 2) * 20480 + i * 1024
            a('ds_read_b128', R(ACC + 20 * src + 4 * i, 4), 'v251' if src < 2 else 'v252', mods='offset:%d' % off)
    for r in range(20):
        a('v_add_f32', R(ACC + r), R(ACC + r), R(ACC + 20 + r))
    for r in range(20):
        a('v_add_f32', R(ACC + 40 + r), R(ACC + 40 + r), R(ACC + 60 + r))
    for r in range(20):
        a('v_add_f32', R(ACC + r), R(ACC + r), R(ACC + 40 + r))
    T = 96
    for q in range(10):
        a('v_cvt_pk_bf16_f32', R(T + q), R(ACC + 2 * q), R(ACC + 2 * q + 1))
    def unpack(dst, src):
        for q in range(10):
            a('v_lshlrev_b32', R(dst + 2 * q), 16, R(src + q))
            a('v_and_b32', R(dst + 2 * q + 1), '0xffff0000', R(src + q))
    unpack(ACC, T)
    if bias:
        unpack(ACC + 20, BI)
        for r in range(20):
            a('v_add_f32', R(ACC + r), R(ACC + r), R(ACC + 20 + r))
        for q in range(10):
            a('v_cvt_pk_bf16_f32', R(T + q), R(ACC + 2 * q), R(ACC + 2 * q + 1))
        unpack(ACC, T)
    unpack(ACC + 20, RES)
    for r in range(20):
        a('v_add_f32', R(ACC + r), R(ACC + r), R(ACC + 20 + r))
    for q in range(10):
        a('v_cvt_pk_bf16_f32', R(T + q), R(ACC + 2 * q), R(ACC + 2 * q + 1))
    if final:
        a('s_lshl_b32', 's30', 's25', 5)
        a('s_and_b32', 's27', 's3', 1)
        a('s_lshl_b32', 's27', 's27', 4)
        a('s_add_u32', 's30', 's30', 's27')
        a('s_mul_i32', 's30', 's30', 1280)
        a('s_mul_i32', 's27', 's19', 160)
        a('s_add_u32', 's30', 's30', 's27')
        a('v_mul_u32_u24', 'v253', 1280, 'v14')
        a('v_lshl_add_u32', 'v253', 'v15', 3, 'v253')
        for i in range(5):
            a('buffer_store_dwordx2', R(T + 2 * i, 2), 'v253', 's[12:15]', 's30', mods='offen offset:%d' % (32 * i))
    else:
        for i in range(5):
            a('s_add_u32', 's30', S(32 + i), XOUT)
            a('buffer_store_dwordx2', R(T + 2 * i, 2), 'v2', 's[4:7]', 's30', mods='offen')
        a('s_mov_b32', 's40', hex(ONES_BF16))
        a('v_mov_b32', 'v110', 0)
        a('v_mov_b32', 'v111', 0)
        for q in range(10):
            a('v_dot2_f32_bf16', 'v110', R(T + q), 's40', 'v110')
            a('v_dot2_f32_bf16', 'v111', R(T + q), R(T + q), 'v111')
        for sw in ('v_permlane16_swap_b32', 'v_permlane32_swap_b32'):
            a('v_mov_b32', 'v112', 'v110')
            a('v_mov_b32', 'v113', 'v111')
            a(sw, 'v110', 'v112')
            a(sw, 'v111', 'v113')
            a('v_add_f32', 'v110', 'v110', 'v112')
            a('v_add_f32', 'v111', 'v111', 'v113')
        a('s_lshl_b32', 's30', 's25', 3)
        a('s_add_u32', 's30', 's30', 's19')
        a('s_lshl_b32', 's30', 's30', 8)
        a('s_and_b32', 's27', 's3', 1)
        a('s_lshl_b32', 's27', 's27', 7)
        a('s_add_u32', 's30', 's30', 's27')
        a('s_add_u32', 's30', 's30', STOUT)
        a('v_lshlrev_b32', 'v253', 3, 'v14')
        a('buffer_store_dwordx2', 'v[110:111]', 'v253', 's[4:7]', 's30', mods='offen')
    a.label(L + '_end')
    end(a, L)
    return (L, 256, 256, 80 * 1024)

def gen_ffn1(a, label='ffn1_kernel'):
    L = label
    begin(a, L)
    exit_if_ge(a, 256, L + '_end')
    load_srds(a, [('ws', 4)])
    a('v_lshrrev_b32', 'v1', 6, 'v0')
    a('v_and_b32', 'v0', 63, 'v0')
    a('v_readfirstlane_b32', 's3', 'v1')
    a('v_lshlrev_b32', 'v1', 4, 'v0')
    a('v_lshlrev_b32', 'v2', 3, 'v0')
    a('s_and_b32', 's16', 's2', 7)
    a('s_lshr_b32', 's17', 's2', 3)
    a('s_and_b32', 's18', 's17', 1)
    a('s_lshr_b32', 's19', 's17', 1)
    a('s_lshl_b32', 's20', 's16', 3)
    a('s_lshl_b32', 's21', 's18', 2)
    a('s_add_u32', 's20', 's20', 's21')
    a('s_add_u32', 's20', 's20', 's3')
    a('s_lshl_b32', 's22', 's20', 11)
    a('s_add_u32', 's22', 's22', STB)
    a('s_mul_i32', 's23', 's19', KSQ * 3072)
    a('s_add_u32', 's23', 's23', W1P)
    a('s_mul_i32', 's24', 's20', 40960)
    a('s_add_u32', 's24', 's24', XB)
    a('s_lshl_b32', 's25', 's3', 13)
    a('s_mul_i32', 's26', 's3', 7168)
    a.wait(lgkm=0)
    ST = 8
    for i in range(4):
        a('buffer_load_dwordx2', R(ST + 2 * i, 2), 'v2', 's[4:7]', 's22', mods='offen offset:%d' % (512 * i))
    XR = 96
    avail = [10, 21, 32, 41]
    xs = 1
    marks = []
    nops = 4
    for q in range(4):
        n = 8 if q < 3 else 7
        a('s_add_u32', 's27', 's25' if q < 3 else 's26', q * 32768)
        a('s_add_u32', 's28', 's27', 's23')
        for i in range(n):
            if i % 4 == 0:
                a('s_mov_b32', 'm0', 's27')
            a('buffer_load_dwordx4', 'v1', 's[4:7]', 's28', mods='offen offset:%d lds' % (1024 * (i % 4)))
            nops += 1
            if i == 3:
                a('s_add_u32', 's27', 's27', 4096)
                a('s_add_u32', 's28', 's28', 4096)
        marks.append(nops)
        while xs < avail[q]:
            s = xs - 1
            a('buffer_load_dwordx4', R(XR + 4 * s, 4), 'v1', 's[4:7]', 's24', mods='offen offset:%d' % (1024 * (s % 4)))
            nops += 1
            if s % 4 == 3:
                a('s_add_u32', 's24', 's24', 4096)
            xs += 1
    total = nops
    AUG = 4; RSTD = 3
    stats_to_aug(a, ST, AUG, RSTD, 16)
    a('v_add_u32', 'v16', 0xF000, 'v1')
    a('v_add_u32', 'v17', 0x1E000, 'v1')
    WR = 20
    NR = 2
    ACC = 48
    def wread(s):
        for T in range(3):
            off = (s * 3 + T) * 1024
            base = 'v1'
            if off >= 122880:
                off -= 122880; base = 'v17'
            elif off >= 61440:
                off -= 61440; base = 'v16'
            a('ds_read_b128', R(WR + 12 * (s % NR) + 4 * T, 4), base, mods='offset:%d' % off)
    s = 0
    for q in range(4):
        a.wait(vm=total - marks[q])
        a('s_barrier')
        wread(s)
        while s < avail[q]:
            if s + 1 < avail[q]:
                wread(s + 1)
            xf = R(AUG, 4) if s == 0 else R(XR + 4 * (s - 1), 4)
            for T in range(3):
                c = '0' if s == 0 else R(ACC + 16 * T, 16)
                a('v_mfma_f32_32x32x16_bf16', R(ACC + 16 * T, 16), R(WR + 12 * (s % NR) + 4 * T, 4), xf, c)
            s += 1
    a('s_mul_i32', 's27', 's20', 192 * 512)
    a('s_mul_i32', 's28', 's19', 12 * 512)
    a('s_add_u32', 's27', 's27', 's28')
    a('s_add_u32', 's27', 's27', HB)
    a('s_add_u32', 's28', 's27', 4096)
    P = 96
    for T in range(3):
        for r in range(16):
            a('v_mul_f32', R(ACC + 16 * T + r), R(RSTD), R(ACC + 16 * T + r))
        for r in range(16):
            a('v_max_f32', R(ACC + 16 * T + r), 0, R(ACC + 16 * T + r))
        for r in range(16):
            a('v_mul_f32', R(ACC + 16 * T + r), R(ACC + 16 * T + r), R(ACC + 16 * T + r))
        for q in range(8):
            a('v_cvt_pk_bf16_f32', R(P + 8 * T + q), R(ACC + 16 * T + 2 * q), R(ACC + 16 * T + 2 * q + 1))
        for hf in range(2):
            n = 2 * T + hf
            a('buffer_store_dwordx4', R(P + 8 * T + 4 * hf, 4), 'v1', 's[4:7]', 's27' if n < 4 else 's28',
              mods='offen offset:%d' % (1024 * (n & 3)))
    a.label(L + '_end')
    end(a, L)
    return (L, 256, 256, 124 * 1024)

def gen_empty(a, label='empty_kernel'):
    begin(a, label)
    a('v_mov_b32', 'v1', 0)
    end(a, label)
    return (label, 256, 256, 0)

def build(extra_empty=0, upto=None):
    a = Asm()
    kp = gen_prep(a)
    kq = gen_qkv(a)
    ka = gen_att(a)
    kw = gen_n80(a, 'wo_kernel', 20, OB, 80, WOP, XA, XB, STB, False, False)
    k1 = gen_ffn1(a)
    k2 = gen_n80(a, 'ffn2_kernel', 48, HB, 192, W2P, XB, XA, STA, True, False)
    k2f = gen_n80(a, 'ffn2f_kernel', 48, HB, 192, W2P, XB, XA, STA, True, True)
    launches = [kp, kq, ka, kw, k1, k2, kq, ka, kw, k1, k2f]
    if extra_empty:
        ke = gen_empty(a)
        launches = launches + [ke] * extra_empty
    hdr = open('cdna_kernels/%s.s.ref' % NAME).read().split('; Override launch')[0]
    out = hdr
    for (l, g, b, lds) in launches:
        out += '; @launch kernel=%s grid=(%d,1,1) block=(%d,1,1) lds=%d\n' % (l, g, b, lds)
    out += '.amdgcn_target "amdgcn-amd-amdhsa--gfx950"\n.text\n'
    out += a.text()
    out += '.section .rodata,"a"\n'
    for (l, tot, acc, sg) in kernels:
        out += '.p2align 6\n.amdhsa_kernel %s\n' % l
        out += '  .amdhsa_next_free_vgpr %d\n  .amdhsa_next_free_sgpr %d\n  .amdhsa_accum_offset %d\n' % (tot, max(sg, 8), acc)
        out += '  .amdhsa_group_segment_fixed_size 0\n  .amdhsa_kernarg_size 88\n'
        out += '  .amdhsa_user_sgpr_count 2\n  .amdhsa_user_sgpr_kernarg_segment_ptr 1\n'
        out += '  .amdhsa_system_sgpr_workgroup_id_x 1\n  .amdhsa_float_denorm_mode_32 3\n'
        out += '.end_amdhsa_kernel\n'
    return out

if __name__ == '__main__':
    import argparse
    p = argparse.ArgumentParser()
    p.add_argument('-o', default='cdna_kernels/%s.s' % NAME)
    p.add_argument('--empty', type=int, default=0)
    args = p.parse_args()
    open(args.o, 'w').write(build(args.empty))
    print('wrote', args.o, kernels)
```
